```python
import torch

def _softmax(x, axis=-1):
    return torch.softmax(x, dim=axis)
def _gelu(x):
    return torch.nn.functional.gelu(x, approximate="tanh")
def _silu(x):
    return torch.nn.functional.silu(x)
def _sigmoid(x):
    return torch.sigmoid(x)
def _layernorm(x, axis=-1, eps=1e-5):
    m = x.mean(dim=axis, keepdim=True)
    v = x.var(dim=axis, keepdim=True, unbiased=False)
    return (x - m) / torch.sqrt(v + eps)
def _scatter_add(tgt, idx, src, axis=0):
    return tgt.clone().index_add_(axis, idx, src)
def _segment_sum(src, seg, n):
    out = torch.zeros((n,) + src.shape[1:], dtype=src.dtype)
    return out.index_add_(0, seg, src)
def _pad(x, pw):
    flat = tuple(v for pair in reversed(pw) for v in pair)
    return torch.nn.functional.pad(x, flat)

kernel_name = 'parallel_sum__ssm_conv_s5__mixer_token_mlp__prompt'

def setup_inputs():

    _w = (lambda a: (lambda t: t.to(torch.bfloat16) if t.is_floating_point() else t)(torch.as_tensor(a)))
    def _A_setup():
        B, S, D = 1, 2048, 448
        P = D
        Lambda_re = -0.5 * (lambda _x: torch.exp(torch.as_tensor(_x)))((lambda *s: torch.randn(*s, dtype=torch.bfloat16) * 0.1)(P))
        Lambda_im = (lambda *s: torch.randn(*s, dtype=torch.bfloat16) * 0.4)(P) * 1.0
        B_re = (lambda *s: torch.randn(*s, dtype=torch.bfloat16) * 0.2)(P, D) * (D ** -0.5)
        B_im = (lambda *s: torch.randn(*s, dtype=torch.bfloat16) * 0.2)(P, D) * (D ** -0.5)
        C_re = (lambda *s: torch.randn(*s, dtype=torch.bfloat16) * 0.2)(D, P) * (P ** -0.5)
        C_im = (lambda *s: torch.randn(*s, dtype=torch.bfloat16) * 0.2)(D, P) * (P ** -0.5)
        log_dt = (lambda *s: torch.randn(*s, dtype=torch.bfloat16) * 0.1)(P) * 0.3 - 2.0
        Dskip = (lambda *s: torch.randn(*s, dtype=torch.bfloat16) * 0.05)(D)
        return {
            "x": _w((lambda *s: torch.randn(*s, dtype=torch.bfloat16) * 0.05)(B, S, D)),
            "Lambda_re": _w(Lambda_re),
            "Lambda_im": _w(Lambda_im),
            "B_re": _w(B_re),
            "B_im": _w(B_im),
            "C_re": _w(C_re),
            "C_im": _w(C_im),
            "log_dt": _w(log_dt),
            "Dskip": _w(Dskip),
        }
    _A_in = _A_setup()

    def _B_setup():
        B, S, D, F = 1, 2048, 448, 1792
        return {
            "x": _w((lambda *s: torch.randn(*s, dtype=torch.bfloat16) * 0.05)(B, S, D)),
            "w1": _w((lambda *s: torch.randn(*s, dtype=torch.bfloat16) * 0.8)(S, F) * (S ** -0.5)),
            "b1": _w((lambda *s: torch.randn(*s, dtype=torch.bfloat16) * 3.2)(F) * 0.02),
            "w2": _w((lambda *s: torch.randn(*s, dtype=torch.bfloat16) * 0.4)(F, S) * (F ** -0.5)),
            "b2": _w((lambda *s: torch.randn(*s, dtype=torch.bfloat16) * 1.6)(S) * 0.02),
        }
    _B_in = _B_setup()

    return {
        "A_x": _A_in["x"],
        "A_Lambda_re": _A_in["Lambda_re"],
        "A_Lambda_im": _A_in["Lambda_im"],
        "A_B_re": _A_in["B_re"],
        "A_B_im": _A_in["B_im"],
        "A_C_re": _A_in["C_re"],
        "A_C_im": _A_in["C_im"],
        "A_log_dt": _A_in["log_dt"],
        "A_Dskip": _A_in["Dskip"],
        "B_x": _B_in["x"],
        "B_w1": _B_in["w1"],
        "B_b1": _B_in["b1"],
        "B_w2": _B_in["w2"],
        "B_b2": _B_in["b2"],
    }

def reference(A_x, A_Lambda_re, A_Lambda_im, A_B_re, A_B_im, A_C_re, A_C_im, A_log_dt, A_Dskip, B_x, B_w1, B_b1, B_w2, B_b2):
    def _A_ref(x, Lambda_re, Lambda_im, B_re, B_im, C_re, C_im, log_dt, Dskip):
        Bsz, L, H = x.shape
        Lam = Lambda_re + 1j * Lambda_im
        Bmat = B_re + 1j * B_im
        Cmat = C_re + 1j * C_im
        dt = torch.exp(log_dt)
        Lam_bar = torch.exp(dt * Lam)
        B_bar = ((Lam_bar - 1.0) / Lam)[:, None] * Bmat
        Bu = torch.einsum("bld,pd->blp", x + 0j, B_bar)
        h = torch.zeros_like(Bu[:, 0, :])
        hs = []
        for t in range(L):
            h = Lam_bar[None, :] * h + Bu[:, t, :]
            hs.append(h)
        hseq = torch.stack(hs, 1)
        y = 2.0 * torch.einsum("blp,dp->bld", hseq, Cmat).real + x * Dskip[None, None, :]
        return y

    def _B_ref(x, w1, b1, w2, b2):
        B, S, D = x.shape
        h = _layernorm(x, axis=-1)
        u = torch.einsum("bsd,sf->bdf", h, w1) + b1
        u = _gelu(u)
        y = torch.einsum("bdf,fs->bds", u, w2) + b2
        return (lambda x, *d: x.permute(*d))(y, 0, 2, 1)

    x = A_x
    xn = _layernorm(x, axis=-1)
    return x + _A_ref(xn, A_Lambda_re, A_Lambda_im, A_B_re, A_B_im, A_C_re, A_C_im, A_log_dt, A_Dskip) + _B_ref(xn, B_w1, B_b1, B_w2, B_b2)
```

```python
import struct
import sys

S, D, P, F = 2048, 448, 448, 1792
NAME = "parallel_sum__ssm_conv_s5__mixer_token_mlp__prompt_kernel"
WS_HA = 0
WS_XNA = WS_HA + 14 * 128 * 1024
WS_WB = WS_XNA + 64 * 28 * 1024
WS_BUO = WS_WB + 14 * 168 * 1024
WS_HO = WS_BUO + 2 * 256 * 448 * 16
WS_AGG = WS_HO + 2 * 256 * 448 * 16
WS_RS = WS_AGG + 64 * 448 * 8
WS_RM = WS_RS + 2048 * 4
WS_F1 = (WS_RM + 2048 * 4 + 4095) // 4096 * 4096
FSH = 6
FSP = 1 << FSH
WS_F3 = WS_F1 + 256 * FSP
WS_F4 = WS_F3 + 7 * 32 * FSP
WS_END = WS_F4 + 8 * 16 * FSP
WS_TS = 16 << 20
OOB = 0x80000000
L_RING = 0
L_RED = 32768
L_SLOT = 32768
SLOT = 24576
L_RING2 = 0
L_STAT = L_SLOT + 5 * SLOT
L_CNT = L_STAT + 1536
N_BUSIG, N_A32, N_G, N_USIG, N_S4, N_S3, N_Z, N_W = 0, 4, 8, 12, 16, 20, 24, 28
L_AGG = 147456
LDS_BYTES = L_AGG + 8 * 512 + 512
C_S1, C_S2, C_S3, C_S4 = 0, 32, 46, 53
SC = "sc1"
SPIN_MAX = 0x20000
sN = 75
LSC = 'sc1'
POLL_SLEEP = 4

KA = dict(x=0, lre=8, lim=16, bre=24, bim=32, cre=40, cim=48, logdt=56, dskip=64,
          bx=72, w1=80, b1=88, w2=96, b2=104, out=112, dbg=120, ws=128)
sB_, sW, sX, sJ = 2, 3, 4, 5
pX, pLRE, pLIM, pBRE, pBIM, pCRE, pCIM, pLDT = 16, 18, 20, 22, 24, 26, 28, 30
pDSK, pW1, pB1, pW2, pB2, pOUT, pDBG, pWS = 32, 36, 38, 40, 42, 44, 46, 48
rWS, rA, rB, rC, rD = 52, 56, 60, 64, 68
LOG2E = 1.4426950408889634
INV2PI = 0.15915494309189535
GELU_C0 = -2.0 * 0.7978845608028654 * 1.4426950408889634
GELU_C1 = GELU_C0 * 0.044715

OPT = dict(w2_s1=False, c_warm=False, h_warm=False, h_step=28, s1_wait=1, s3_wait=0, g1_npre=4, g2_npre=4, rot_u=True, bu_nops=0, warm_after=True, bu_pre=0, s3_sleep=6, bu_lead=3, w2_at='g1end', pf_w1=True, pf_w2=True, mimic_u=True, up0=4, fill=24, c2_early=True, pf_w1_at=3, rot_c=True, exp='', stamps='main', ts_wave=0, pf_parts=4, g1_pre_at=3, w2_early=False, bar_w=True, lsleep=4, pf_spare=False, pace=True, w_early=True, pf_w1_b=False, pf_c=True, nt_pf='', nt_w='', nt_x='', nt_out='', lb_sleep=6, g1_up=2, g1_fill=24, s2_step=3)


def fhex(x):
    return hex(struct.unpack("<I", struct.pack("<f", x))[0])


class Asm:
    def __init__(self):
        self.L = []
        self.fill = None
        self.cnt = 0

    def __call__(self, s):
        for ln in s.strip("\n").split("\n"):
            ln = ln.strip()
            if not ln:
                continue
            self.L.append("  " + ln)
            if self.fill and ln.startswith("v_"):
                self.cnt += 1
                if self.cnt >= self.fill[0] and self.fill[1]:
                    self.cnt = 0
                    f, self.fill = self.fill, None
                    f[1].pop(0)()
                    self.fill = f

    def start_fill(self, every, queue):
        self.fill = (every, queue)
        self.cnt = 0

    def stop_fill(self):
        f, self.fill = self.fill, None
        while f and f[1]:
            f[1].pop(0)()

    def label(self, n):
        self.L.append(n + ":")

    def raw(self, s):
        self.L.append(s)

    def text(self):
        return "\n".join(self.L) + "\n"


class VM:
    def __init__(self, a):
        self.a = a
        self.ops = []

    def issue(self, tag, text):
        self.a(text)
        self.ops.append(tag)

    def wait(self, tag, extra=""):
        if tag not in self.ops:
            if extra:
                self.a(f"s_waitcnt {extra}")
            return
        idx = max(i for i, t in enumerate(self.ops) if t == tag)
        n = len(self.ops) - 1 - idx
        assert n <= 63, n
        self.a(f"s_waitcnt vmcnt({n}) {extra}".strip())
        self.ops = self.ops[len(self.ops) - n:] if n else []

    def drain(self, extra=""):
        self.a(f"s_waitcnt vmcnt(0) {extra}".strip())
        self.ops = []


def srd(a, s, base, size):
    a(f"s_mov_b32 s{s}, s{base}")
    a(f"s_and_b32 s{s+1}, s{base+1}, 0xffff")
    a(f"s_mov_b32 s{s+2}, {size}")
    a(f"s_mov_b32 s{s+3}, 0x20000")


NTS, TSB = 12, 76
DIAG = False


def ts(a, i, group="main"):
    if DIAG and (group == OPT["stamps"] or i == 0 or (i == NTS - 1 and group == "main")):
        a(f"s_memrealtime s[{TSB+2*i}:{TSB+2*i+1}]")


def tc(a, i, group):
    if DIAG and group == OPT["stamps"]:
        a(f"s_memtime s[{TSB+2*i}:{TSB+2*i+1}]")


def ts_begin(a):
    if DIAG:
        for i in range(NTS):
            a(f"s_mov_b64 s[{TSB+2*i}:{TSB+2*i+1}], 0")
        ts(a, 0)


def ts_end(a, lbl="L_ts"):
    if not DIAG:
        return
    ts(a, NTS - 1)
    a("s_waitcnt lgkmcnt(0)")
    a(f"s_add_u32 s100, s{pWS}, {WS_TS}")
    a(f"s_addc_u32 s101, s{pWS+1}, 0")
    a("s_lshl_b32 s50, s2, 7")
    a("v_mov_b32 v8, s50")
    a(f"v_cmp_eq_u32 vcc, {64*OPT['ts_wave']}, v0")
    a("s_and_saveexec_b64 s[50:51], vcc")
    a(f"s_cbranch_execz {lbl}")
    for q in range(NTS // 2):
        for e in range(4):
            a(f"v_mov_b32 v{4+e}, s{TSB+4*q+e}")
        a(f"global_store_dwordx4 v8, v[4:7], s[100:101] offset:{16*q}")
        a("s_nop 1")
    a.label(lbl)
    a("s_mov_b64 exec, s[50:51]")


def unpack(a, src, lo, hi):
    a(f"v_lshlrev_b32 v{lo}, 16, v{src}")
    a(f"v_and_b32 v{hi}, 0xffff0000, v{src}")


def reduce64x(a, vs, sdsts):
    a("s_nop 1")
    pad = "s_nop 0" if len(vs) >= 2 else "s_nop 1"
    for sh in (1, 2, 4, 8):
        for v in vs:
            a(f"v_add_f32_dpp v{v}, v{v}, v{v} row_shr:{sh} row_mask:0xf bank_mask:0xf bound_ctrl:0")
        a(pad)
    for v in vs:
        a(f"v_add_f32_dpp v{v}, v{v}, v{v} row_bcast:15 row_mask:0xa bank_mask:0xf")
    a(pad)
    for v in vs:
        a(f"v_add_f32_dpp v{v}, v{v}, v{v} row_bcast:31 row_mask:0xc bank_mask:0xf")
    a("s_nop 0")
    for v, s in zip(vs, sdsts):
        a(f"v_readlane_b32 s{s}, v{v}, 63")
    a("s_nop 1")


def layernorm2(a, rows, smask, vinv, sred, unpack_out, stat=None):
    def each(f):
        for r in rows:
            f(r)
    M = f"s[{smask}:{smask+1}]"
    for (i, j, k) in ((0, 0, 1), (1, 2, 3), (2, 4, 5), (3, 6, 7)):
        each(lambda r: a(f"v_add_f32 v{r['T'][i]}, v{r['X'][j]}, v{r['X'][k]}"))
    each(lambda r: a(f"v_add_f32 v{r['T'][0]}, v{r['T'][0]}, v{r['T'][1]}"))
    each(lambda r: a(f"v_add_f32 v{r['T'][2]}, v{r['T'][2]}, v{r['T'][3]}"))
    each(lambda r: a(f"v_add_f32 v{r['T'][0]}, v{r['T'][0]}, v{r['T'][2]}"))
    each(lambda r: a(f"v_cndmask_b32 v{r['T'][0]}, 0, v{r['T'][0]}, {M}"))
    reduce64x(a, [r['T'][0] for r in rows], sred)
    for r, s in zip(rows, sred):
        a(f"v_mul_f32 v{r['T'][1]}, s{s}, v{vinv}")
    for q in range(4):
        each(lambda r: a(f"v_pk_add_f32 v[{r['E'][2*q]}:{r['E'][2*q+1]}], v[{r['X'][2*q]}:{r['X'][2*q+1]}], "
                         f"v[{r['T'][0]}:{r['T'][1]}] op_sel:[0,1] op_sel_hi:[1,1] neg_lo:[0,1] neg_hi:[0,1]"))
    each(lambda r: a(f"v_pk_mul_f32 v[{r['T'][2]}:{r['T'][3]}], v[{r['E'][0]}:{r['E'][1]}], v[{r['E'][0]}:{r['E'][1]}]"))
    for q in range(1, 4):
        each(lambda r: a(f"v_pk_fma_f32 v[{r['T'][2]}:{r['T'][3]}], v[{r['E'][2*q]}:{r['E'][2*q+1]}], "
                         f"v[{r['E'][2*q]}:{r['E'][2*q+1]}], v[{r['T'][2]}:{r['T'][3]}]"))
    each(lambda r: a(f"v_add_f32 v{r['T'][0]}, v{r['T'][2]}, v{r['T'][3]}"))
    each(lambda r: a(f"v_cndmask_b32 v{r['T'][0]}, 0, v{r['T'][0]}, {M}"))
    reduce64x(a, [r['T'][0] for r in rows], sred)
    for r, s in zip(rows, sred):
        a(f"v_mul_f32 v{r['T'][0]}, s{s}, v{vinv}")
    each(lambda r: a(f"v_cvt_pk_bf16_f32 v{r['T'][2]}, v{r['T'][1]}, v{r['T'][0]}"))
    each(lambda r: a(f"v_lshlrev_b32 v{r['T'][1]}, 16, v{r['T'][2]}"))
    each(lambda r: a(f"v_and_b32 v{r['T'][0]}, 0xffff0000, v{r['T'][2]}"))
    each(lambda r: a(f"v_add_f32 v{r['T'][0]}, 0x3727c5ac, v{r['T'][0]}"))
    for q in range(4):
        each(lambda r: a(f"v_pk_add_f32 v[{r['E'][2*q]}:{r['E'][2*q+1]}], v[{r['X'][2*q]}:{r['X'][2*q+1]}], "
                         f"v[{r['T'][0]}:{r['T'][1]}] op_sel:[0,1] op_sel_hi:[1,1] neg_lo:[0,1] neg_hi:[0,1]"))
    each(lambda r: a(f"v_cvt_pk_bf16_f32 v{r['T'][0]}, v{r['T'][0]}, v{r['T'][0]}"))
    each(lambda r: a(f"v_and_b32 v{r['T'][0]}, 0xffff0000, v{r['T'][0]}"))
    each(lambda r: a(f"v_sqrt_f32 v{r['T'][0]}, v{r['T'][0]}"))
    for i in range(4):
        each(lambda r: a(f"v_cvt_pk_bf16_f32 v{r['pk'][i]}, v{r['E'][2*i]}, v{r['E'][2*i+1]}"))
    each(lambda r: a(f"v_cvt_pk_bf16_f32 v{r['T'][0]}, v{r['T'][0]}, v{r['T'][0]}"))
    each(lambda r: a(f"v_and_b32 v{r['T'][0]}, 0xffff0000, v{r['T'][0]}"))
    each(lambda r: a(f"v_rcp_f32 v{r['T'][0]}, v{r['T'][0]}"))
    for i in range(4):
        each(lambda r: unpack(a, r['pk'][i], r['E'][2 * i], r['E'][2 * i + 1]))
    for q in range(4):
        each(lambda r: a(f"v_pk_mul_f32 v[{r['E'][2*q]}:{r['E'][2*q+1]}], v[{r['E'][2*q]}:{r['E'][2*q+1]}], "
                         f"v[{r['T'][0]}:{r['T'][1]}] op_sel_hi:[1,0]"))
    for i in range(4):
        each(lambda r: a(f"v_cvt_pk_bf16_f32 v{r['pk'][i]}, v{r['E'][2*i]}, v{r['E'][2*i+1]}"))
    if unpack_out:
        for k, r in enumerate(rows):
            a(f"v_mov_b32 v{stat+k}, v{r['T'][0]}")
            a(f"v_mul_f32 v{stat+2+k}, v{r['T'][0]}, v{r['T'][1]}")
        for i in range(4):
            each(lambda r: unpack(a, r['pk'][i], r['X'][2 * i], r['X'][2 * i + 1]))


def lam_bar(a, lre, lim, ldt, ore, oim, t0, t1, t2):
    a(f"v_lshlrev_b32 v{lre}, 16, v{lre}")
    a(f"v_lshlrev_b32 v{lim}, 16, v{lim}")
    a(f"v_lshlrev_b32 v{ldt}, 16, v{ldt}")
    a(f"v_mul_f32 v{t0}, {fhex(LOG2E)}, v{ldt}")
    a(f"v_exp_f32 v{t0}, v{t0}")
    a("s_nop 0")
    a(f"v_cvt_pk_bf16_f32 v{t0}, v{t0}, v{t0}")
    a(f"v_and_b32 v{t0}, 0xffff0000, v{t0}")
    a(f"v_mul_f32 v{t1}, v{t0}, v{lre}")
    a(f"v_mul_f32 v{t2}, v{t0}, v{lim}")
    a(f"v_mul_f32 v{t1}, {fhex(LOG2E)}, v{t1}")
    a(f"v_mul_f32 v{t2}, {fhex(INV2PI)}, v{t2}")
    a(f"v_exp_f32 v{t1}, v{t1}")
    a(f"v_rndne_f32 v{t0}, v{t2}")
    a(f"v_sub_f32 v{t2}, v{t2}, v{t0}")
    a(f"v_cos_f32 v{ore}, v{t2}")
    a(f"v_sin_f32 v{oim}, v{t2}")
    a("s_nop 0")
    a(f"v_mul_f32 v{ore}, v{t1}, v{ore}")
    a(f"v_mul_f32 v{oim}, v{t1}, v{oim}")


def csquare(a, re, im, t0, t1):
    a(f"v_mul_f32 v{t0}, v{im}, v{im}")
    a(f"v_mul_f32 v{t1}, v{re}, v{im}")
    a(f"v_fma_f32 v{re}, v{re}, v{re}, -v{t0}")
    a(f"v_add_f32 v{im}, v{t1}, v{t1}")


def cfma(a, dr, di, lr, li, xr, xi, br, bi):
    a(f"v_fma_f32 v{dr}, v{lr}, v{xr}, v{br}")
    a(f"v_fma_f32 v{di}, v{lr}, v{xi}, v{bi}")
    a(f"v_fma_f32 v{dr}, -v{li}, v{xi}, v{dr}")
    a(f"v_fma_f32 v{di}, v{li}, v{xr}, v{di}")


def halves(a, x, y):
    a("s_nop 1")
    a(f"v_permlane32_swap_b32 v{x}, v{y}")


_uid = [0]


def uid(p):
    _uid[0] += 1
    return f"{p}{_uid[0]}"


def signal(a, base, idx_sgpr):
    l = uid("L_sig")
    a(f"s_cmp_lg_u32 s{sW}, 0")
    a(f"s_cbranch_scc1 {l}")
    a(f"s_lshl_b32 s50, s{idx_sgpr}, {FSH}")
    a(f"s_add_u32 s50, s50, {base}")
    a("v_mov_b32 v252, s50")
    a(f"v_mov_b32 v253, s{sN}")
    a("v_cmp_eq_u32 vcc, 0, v1")
    a("s_and_saveexec_b64 s[50:51], vcc")
    l2 = uid("L_sg2")
    a(f"s_cbranch_execz {l2}")
    a(f"buffer_store_dword v253, v252, s[{rWS}:{rWS+3}], 0 offen sc1")
    a.label(l2)
    a("s_mov_b64 exec, s[50:51]")
    a.label(l)


def poll(a, base, n, base_sgpr=None):
    l, lo = uid("L_poll"), uid("L_pol")
    a(f"s_cmp_lg_u32 s{sW}, 0")
    a(f"s_cbranch_scc1 {lo}")
    a(f"v_min_u32 v2, {min(n, 64)-1}, v1")
    a("v_lshlrev_b32 v2, 4, v2")
    if base_sgpr is not None:
        a(f"v_add_u32 v2, s{base_sgpr}, v2")
    a(f"v_add_u32 v2, {base}, v2")
    a("s_mov_b32 s50, 0")
    a.label(l)
    nl = (n + 63) // 64
    for q in range(nl):
        a(f"buffer_load_dword v{252+q}, v2, s[{rWS}:{rWS+3}], 0 offen offset:{1024*q} sc1")
    a("s_waitcnt vmcnt(0)")
    a(f"v_xor_b32 v3, s{sN}, v252")
    for q in range(1, nl):
        a(f"v_xor_b32 v{252+q}, s{sN}, v{252+q}")
        a(f"v_or_b32 v3, v3, v{252+q}")
    a("v_cmp_ne_u32 vcc, 0, v3")
    a("s_add_u32 s50, s50, 1")
    a(f"s_cmp_ge_u32 s50, {SPIN_MAX}")
    a(f"s_cbranch_scc1 {lo}")
    a(f"s_cbranch_vccz {lo}")
    a(f"s_sleep {POLL_SLEEP}")
    a(f"s_branch {l}")
    a.label(lo)
    a("s_barrier")


def poll_issue(a, vm, base, n, vaddr, vdst, base_sgpr=None):
    a(f"v_min_u32 v{vaddr}, {min(n, 64)-1}, v1")
    if base_sgpr is not None:
        a(f"v_add_u32 v{vaddr}, s{base_sgpr}, v{vaddr}")
    a(f"v_lshlrev_b32 v{vaddr}, {FSH}, v{vaddr}")
    a(f"s_cmp_eq_u32 s{sW}, 0")
    a(f"s_mov_b32 s51, {OOB}")
    a(f"s_cselect_b32 s50, {base}, s51")
    a(f"v_add_u32 v{vaddr}, s50, v{vaddr}")
    for q in range((n + 63) // 64):
        if q:
            a(f"v_add_u32 v{vdst+q}, {64*FSP*q}, v{vaddr}")
            vm.issue("flag", f"buffer_load_dword v{vdst+q}, v{vdst+q}, s[{rWS}:{rWS+3}], 0 offen sc1")
        else:
            vm.issue("flag", f"buffer_load_dword v{vdst}, v{vaddr}, s[{rWS}:{rWS+3}], 0 offen sc1")


def poll_check(a, vm, n, vaddr, vdst):
    nl = (n + 63) // 64
    vm.wait("flag")
    l, lo = uid("L_pc"), uid("L_pco")
    a(f"s_cmp_lg_u32 s{sW}, 0")
    a(f"s_cbranch_scc1 {lo}")
    a("s_mov_b32 s50, 0")
    a.label(l)
    a(f"v_xor_b32 v{vdst}, s{sN}, v{vdst}")
    for q in range(1, nl):
        a(f"v_xor_b32 v{vdst+q}, s{sN}, v{vdst+q}")
        a(f"v_or_b32 v{vdst}, v{vdst}, v{vdst+q}")
    a(f"v_cmp_ne_u32 vcc, 0, v{vdst}")
    a("s_add_u32 s50, s50, 1")
    a(f"s_cmp_ge_u32 s50, {SPIN_MAX}")
    a(f"s_cbranch_scc1 {lo}")
    a(f"s_cbranch_vccz {lo}")
    a(f"s_sleep {POLL_SLEEP}")
    for q in range(nl):
        if q:
            a(f"v_add_u32 v{vdst+q}, {64*FSP*q}, v{vaddr}")
            a(f"buffer_load_dword v{vdst+q}, v{vdst+q}, s[{rWS}:{rWS+3}], 0 offen sc1")
        else:
            a(f"buffer_load_dword v{vdst}, v{vaddr}, s[{rWS}:{rWS+3}], 0 offen sc1")
    a("s_waitcnt vmcnt(0)")
    a(f"s_branch {l}")
    a.label(lo)
    a("s_barrier")


def lds_arrive(a, off):
    a(f"v_mov_b32 v252, {L_CNT + off}")
    a("v_mov_b32 v253, 1")
    a("s_mov_b64 exec, 1")
    a("ds_add_u32 v252, v253")
    a("s_mov_b64 exec, -1")


def lds_wait(a, off, target, sleep=None):
    l, lo = uid("L_lw"), uid("L_lwo")
    sleep = OPT["lsleep"] if sleep is None else sleep
    a(f"v_mov_b32 v252, {L_CNT + off}")
    a("s_mov_b32 s51, 0")
    a.label(l)
    a("ds_read_b32 v253, v252")
    a("s_waitcnt lgkmcnt(0)")
    a("v_readfirstlane_b32 s50, v253")
    a("s_add_u32 s51, s51, 1")
    a(f"s_cmp_ge_u32 s51, {SPIN_MAX * 8}")
    a(f"s_cbranch_scc1 {lo}")
    a(f"s_cmp_ge_u32 s50, {target}")
    a(f"s_cbranch_scc1 {lo}")
    if sleep:
        a(f"s_sleep {sleep}")
    a(f"s_branch {l}")
    a.label(lo)


def poll_check_lds(a, vm, n, vaddr, vdst, off):
    nl = (n + 63) // 64
    vm.wait("flag")
    l, lo, l2, fin = uid("L_pq"), uid("L_pqo"), uid("L_pqw"), uid("L_pqf")
    a(f"s_cmp_lg_u32 s{sW}, 0")
    a(f"s_cbranch_scc1 {l2}")
    a("s_mov_b32 s50, 0")
    a.label(l)
    a(f"v_xor_b32 v{vdst}, s{sN}, v{vdst}")
    for q in range(1, nl):
        a(f"v_xor_b32 v{vdst+q}, s{sN}, v{vdst+q}")
        a(f"v_or_b32 v{vdst}, v{vdst}, v{vdst+q}")
    a(f"v_cmp_ne_u32 vcc, 0, v{vdst}")
    a("s_add_u32 s50, s50, 1")
    a(f"s_cmp_ge_u32 s50, {SPIN_MAX}")
    a(f"s_cbranch_scc1 {lo}")
    a(f"s_cbranch_vccz {lo}")
    a(f"s_sleep {POLL_SLEEP}")
    for q in range(nl):
        a(f"buffer_load_dword v{vdst+q}, v{vaddr}, s[{rWS}:{rWS+3}], 0 offen offset:{1024*q} sc1")
    a("s_waitcnt vmcnt(0)")
    a(f"s_branch {l}")
    a.label(lo)
    lds_arrive(a, off)
    a(f"s_branch {fin}")
    a.label(l2)
    lds_wait(a, off, 1)
    a.label(fin)


def poll_one(a, base, off_sgpr):
    l, lo = uid("L_po"), uid("L_poo")
    a(f"v_mov_b32 v252, s{off_sgpr}")
    a(f"v_add_u32 v252, {base}, v252")
    a("s_mov_b32 s50, 0")
    a(f"s_cmp_lg_u32 s{sW}, 0")
    a(f"s_cbranch_scc1 {lo}")
    a.label(l)
    a(f"buffer_load_dword v253, v252, s[{rWS}:{rWS+3}], 0 offen sc1")
    a("s_waitcnt vmcnt(0)")
    a(f"v_cmp_ne_u32 vcc, s{sN}, v253")
    a("s_add_u32 s50, s50, 1")
    a(f"s_cmp_ge_u32 s50, {SPIN_MAX}")
    a(f"s_cbranch_scc1 {lo}")
    a(f"s_cbranch_vccz {lo}")
    a("s_sleep 8")
    a(f"s_branch {l}")
    a.label(lo)
    a("s_barrier")


def tag_publish(a):
    l = uid("L_tag")
    a(f"s_or_b32 s50, s{sB_}, s{sW}")
    a("s_cmp_lg_u32 s50, 0")
    a(f"s_cbranch_scc1 {l}")
    a("s_memrealtime s[50:51]")
    a("s_waitcnt lgkmcnt(0)")
    a("s_or_b32 s50, s50, 1")
    a("v_mov_b32 v250, 0")
    a("v_mov_b32 v251, s50")
    a("v_cmp_eq_u32 vcc, 0, v1")
    a("s_and_saveexec_b64 s[50:51], vcc")
    l2 = uid("L_tg2")
    a(f"s_cbranch_execz {l2}")
    a(f"global_store_dword v250, v251, s[{pDBG}:{pDBG+1}] sc1")
    a.label(l2)
    a("s_mov_b64 exec, s[50:51]")
    a.label(l)


def tag_fetch(a, vm):
    a("v_mov_b32 v250, 0")
    vm.issue("tag", f"global_load_dword v251, v250, s[{pDBG}:{pDBG+1}] sc1")


def tag_get(a, vm):
    vm.wait("tag")
    l, lo = uid("L_tagw"), uid("L_tago")
    a("s_mov_b32 s50, 0")
    a.label(l)
    a("s_nop 0")
    a(f"v_readfirstlane_b32 s{sN}, v251")
    a("s_nop 3")
    a(f"s_cmp_lg_u32 s{sN}, 0")
    a(f"s_cbranch_scc1 {lo}")
    a(f"s_cmp_lg_u32 s{sW}, 0")
    a(f"s_cbranch_scc1 {lo}")
    a("s_add_u32 s50, s50, 1")
    a(f"s_cmp_ge_u32 s50, {SPIN_MAX}")
    a(f"s_cbranch_scc1 {lo}")
    a("s_sleep 2")
    a(f"global_load_dword v251, v250, s[{pDBG}:{pDBG+1}] sc1")
    a("s_waitcnt vmcnt(0)")
    a(f"s_branch {l}")
    a.label(lo)


def stream_gemm(a, vm, steps, ASET, BRING, ACC, hooks, pre_all=False):
    n = len(steps)
    DP = 4
    for j in range(DP):
        if pre_all:
            break
        steps[j]["dma"](j, j)
        steps[j]["advA"]()
        steps[j]["bload"](j, j)
        steps[j]["advB"]()
    if "after_prologue" in hooks:
        hooks["after_prologue"]()
    vm.wait(("s", 0))
    steps[0]["tr"](0, 0)
    for i in range(n):
        if i + 1 < n:
            vm.wait(("s", i + 1), "lgkmcnt(0)")
            steps[i + 1]["tr"]((i + 1) & 1, (i + 1) % DP)
        else:
            a("s_waitcnt lgkmcnt(0)")
        if i + DP < n:
            if ("pre", i + DP) in hooks:
                hooks[("pre", i + DP)]()
            steps[i + DP]["dma"](i % DP, i + DP)
            steps[i + DP]["advA"]()
        A = ASET[i & 1]
        B = BRING[i % DP]
        for fi in range(2):
            for dj in range(2):
                c = ACC[fi][dj]
                src = "0" if i == 0 else f"v[{c}:{c+15}]"
                a(f"v_mfma_f32_32x32x16_bf16 v[{c}:{c+15}], v[{A+4*fi}:{A+4*fi+3}], v[{B+4*dj}:{B+4*dj+3}], {src}")
        if i + DP < n:
            steps[i + DP]["bload"](i % DP, i + DP)
            steps[i + DP]["advB"]()
        if ("after", i) in hooks:
            hooks[("after", i)]()


def red_addr(a, vw, vr, vlane16):
    for lq in (1, 2, 3):
        a(f"s_xor_b32 s50, s{sW}, {lq}")
        a("s_lshl_b32 s51, s50, 2")
        a(f"s_add_u32 s51, s51, s{sW}")
        a("s_lshl_b32 s51, s51, 12")
        a(f"s_add_u32 s51, s51, {L_RED}")
        a(f"v_add_u32 v{vw[lq-1]}, s51, v{vlane16}")
        a(f"s_lshl_b32 s51, s{sW}, 2")
        a("s_add_u32 s51, s51, s50")
        a("s_lshl_b32 s51, s51, 12")
        a(f"s_add_u32 s51, s51, {L_RED}")
        a(f"v_add_u32 v{vr[lq-1]}, s51, v{vlane16}")


def red_write(a, ACC, vw):
    for lq in (2, 3, 1):
        fi = lq >> 1
        r0 = 8 * (lq & 1)
        for q in range(4):
            dj = q >> 1
            r = ACC[fi][dj] + r0 + 4 * (q & 1)
            a(f"ds_write_b128 v{vw[lq-1]}, v[{r}:{r+3}] offset:{q*1024}")


def red_read_add(a, ACC, vr, tmp):
    for lq in (1, 2, 3):
        for q in range(4):
            r = tmp + 16 * (lq - 1) + 4 * q
            a(f"ds_read_b128 v[{r}:{r+3}], v{vr[lq-1]} offset:{q*1024}")
    for lq in (1, 2, 3):
        a(f"s_waitcnt lgkmcnt({4*(3-lq)})")
        for q in range(4):
            dj = q >> 1
            d = ACC[0][dj] + 4 * (q & 1)
            r = tmp + 16 * (lq - 1) + 4 * q
            a(f"v_pk_add_f32 v[{d}:{d+1}], v[{d}:{d+1}], v[{r}:{r+1}]")
            a(f"v_pk_add_f32 v[{d+2}:{d+3}], v[{d+2}:{d+3}], v[{r+2}:{r+3}]")


ACC = [[64, 80], [96, 112]]
AS = [32, 40]
BR = [128, 136, 144, 152]
sA, sA0, sBo, sB0, sBe, sRing, sA2, sB2 = 8, 9, 10, 11, 12, 13, 14, 15
sT0, sT1 = 6, 7
sP1e = 73


def warm_lines(a, vm, srd_s, row_stride, rows_per_wg_log2, col_sgpr, tag):
    a(f"s_lshl_b32 s50, s{sJ}, 6")
    a(f"s_lshl_b32 s51, s{sW}, 4")
    a("s_add_u32 s50, s50, s51")
    a(f"s_mul_i32 s50, s50, {row_stride}")
    a(f"s_add_u32 s50, s50, s{col_sgpr}")
    a("v_lshrrev_b32 v254, 2, v1")
    a(f"v_mul_u32_u24 v254, {row_stride}, v254")
    a("v_and_b32 v253, 3, v1")
    a("v_lshl_add_u32 v254, v253, 7, v254")
    vm.issue(tag, f"buffer_load_dword v255, v254, s[{srd_s}:{srd_s+3}], s50 offen")


def a_lane_addr(a, row_stride, swapped):
    a("v_lshrrev_b32 v2, 3, v1")
    a(f"v_mul_u32_u24 v2, {row_stride}, v2")
    a("v_lshrrev_b32 v3, 4, v1")
    a("v_and_b32 v3, 1, v3")
    a("v_lshlrev_b32 v4, 2, v3")
    a("v_and_b32 v5, 7, v1")
    a("v_xor_b32 v4, v4, v5")
    a("v_lshl_add_u32 v2, v4, 4, v2")
    if swapped:
        a("v_and_b32 v4, 1, v1")
        a("v_lshrrev_b32 v16, 1, v1")
        a("v_and_b32 v16, 1, v16")
    else:
        a("v_lshrrev_b32 v4, 1, v1")
        a("v_and_b32 v4, 1, v4")
        a("v_and_b32 v16, 1, v1")
    a("v_lshl_add_u32 v4, v3, 1, v4")
    a(f"s_lshl_b32 s50, s{sW}, 1")
    a("v_xor_b32 v14, s50, v4")
    a("v_lshrrev_b32 v5, 3, v1")
    a("v_and_b32 v5, 1, v5")
    a("v_lshlrev_b32 v5, 2, v5")
    a("v_xor_b32 v4, v14, v5")
    a("v_lshlrev_b32 v6, 4, v4")
    a("v_lshl_add_u32 v6, v16, 3, v6")
    a("v_lshrrev_b32 v15, 2, v1")
    a("v_and_b32 v15, 3, v15")
    a("v_lshrrev_b32 v5, 5, v1")
    a("v_lshl_add_u32 v4, v5, 3, v15")
    a("v_lshl_add_u32 v6, v4, 7, v6")
    a(f"v_add_u32 v6, s{sRing}, v6")
    a("v_xor_b32 v7, 64, v6")
    a(f"v_add_u32 v3, {8*row_stride-1024}, v2")


def tr_rows(a, st, slot):
    r = AS[st]
    o = slot * 2048
    a(f"ds_read_b64_tr_b16 v[{r}:{r+1}], v6 offset:{o}")
    a(f"ds_read_b64_tr_b16 v[{r+2}:{r+3}], v6 offset:{o+512}")
    a(f"ds_read_b64_tr_b16 v[{r+4}:{r+5}], v7 offset:{o}")
    a(f"ds_read_b64_tr_b16 v[{r+6}:{r+7}], v7 offset:{o+512}")


def ln_phase(a, vm):
    a(f"s_lshl_b32 s50, s{sB_}, 3")
    a(f"s_add_u32 s50, s50, s{sW}")
    a("s_mul_i32 s50, s50, 896")
    a("v_lshlrev_b32 v3, 4, v1")
    a("v_add_u32 v3, s50, v3")
    a("v_cmp_gt_u32 s[34:35], 56, v1")
    a(f"v_mov_b32 v2, {OOB}")
    a("v_mov_b32 v68, 0x3b124925")
    a("v_cndmask_b32 v70, v2, v3, s[34:35]")
    a("s_waitcnt lgkmcnt(0)")
    srd(a, rA, pX, S * D * 2)
    vm.issue("xr", f"buffer_load_dwordx4 v[4:7], v70, s[{rA}:{rA+3}], 0 offen")
    tag_publish(a)
    srd(a, rWS, pWS, WS_END)
    a(f"s_cmp_ge_u32 s{sB_}, 56")
    a("s_cselect_b32 s50, 1, 0")
    a(f"s_cselect_b32 s{rC}, s{pCIM}, s{pCRE}")
    a(f"s_cselect_b32 s{rC+1}, s{pCIM+1}, s{pCRE+1}")
    a(f"s_and_b32 s{rC+1}, s{rC+1}, 0xffff")
    a(f"s_mov_b32 s{rC+2}, {D*P*2}")
    a(f"s_mov_b32 s{rC+3}, 0x20000")
    a("s_mul_i32 s51, s50, 56")
    a(f"s_sub_u32 s8, s{sB_}, s51")
    a("s_lshr_b32 s9, s8, 2")
    a("s_mul_i32 s9, s9, 336")
    a("s_add_u32 s9, s9, s51")
    a("s_add_u32 s9, s9, 224")
    a("s_lshl_b32 s9, s9, 9")
    a("s_and_b32 s51, s8, 3")
    a("s_lshl_b32 s51, s51, 7")
    a("s_add_u32 s9, s9, s51")
    a(f"s_add_u32 s9, s9, {WS_WB}")
    a("s_mul_i32 s8, s8, 7168")
    a("v_lshrrev_b32 v82, 3, v0")
    a("v_and_b32 v83, 7, v0")
    a("v_mul_u32_u24 v84, 896, v83")
    a("v_lshl_add_u32 v84, v82, 4, v84")
    a("v_lshlrev_b32 v85, 9, v82")
    a("v_lshl_add_u32 v85, v83, 4, v85")
    a("v_cmp_gt_u32 vcc, 448, v0")
    a(f"s_cmp_lt_u32 s{sB_}, 112")
    a("s_cselect_b64 s[50:51], -1, 0")
    a("v_cndmask_b32 v106, v2, v85, vcc")
    a("v_cndmask_b32 v84, v2, v84, vcc")
    a("v_cndmask_b32 v84, v2, v84, s[50:51]")
    a("v_cndmask_b32 v85, v2, v106, s[50:51]")
    vm.issue("cl", f"buffer_load_dwordx4 v[88:91], v84, s[{rC}:{rC+3}], s8 offen")
    a(f"s_mul_i32 s50, s{sW}, 960")
    a("v_lshlrev_b32 v69, 4, v1")
    a("v_add_u32 v69, s50, v69")
    a("v_and_b32 v20, 15, v1")
    a("v_lshrrev_b32 v21, 2, v20")
    a("v_mul_u32_u24 v21, 960, v21")
    a("v_and_b32 v22, 0x1f0, v0")
    a("v_and_b32 v23, 3, v20")
    a("v_lshl_add_u32 v22, v23, 2, v22")
    a("v_lshl_add_u32 v102, v22, 1, v21")
    a("v_mul_u32_u24 v22, 960, v83")
    a("v_lshl_add_u32 v103, v82, 4, v22")
    a("v_lshrrev_b32 v22, 5, v0")
    a("v_lshlrev_b32 v22, 17, v22")
    a("v_and_b32 v23, 31, v0")
    a("v_lshl_add_u32 v22, v23, 4, v22")
    a("v_cmp_gt_u32 vcc, 448, v0")
    a(f"s_lshl_b32 s12, s{sB_}, 9")
    a(f"s_add_u32 s12, s12, {WS_HA}")
    a("v_cndmask_b32 v104, v2, v22, vcc")
    a(f"s_lshr_b32 s11, s{sB_}, 2")
    a("s_mul_i32 s11, s11, 28672")
    a(f"s_and_b32 s50, s{sB_}, 3")
    a("s_lshl_b32 s50, s50, 7")
    a("s_add_u32 s11, s11, s50")
    a(f"s_add_u32 s11, s11, {WS_XNA}")
    vm.wait("xr")
    ts(a, 1, "ln")
    row = dict(X=list(range(12, 20)), E=list(range(28, 36)), T=[44, 45, 46, 47], pk=None)
    for i in range(4):
        unpack(a, 4 + i, row["X"][2 * i], row["X"][2 * i + 1])
    row["pk"] = [52, 53, 54, 55]
    layernorm2(a, [row], 34, 68, [10], True, stat=108)
    row["pk"] = [60, 61, 62, 63]
    ts(a, 2, "ln")
    layernorm2(a, [row], 34, 68, [10], False)
    ts(a, 3, "ln")
    a("s_mov_b64 exec, s[34:35]")
    a("ds_write_b128 v69, v[52:55]")
    a("ds_write_b128 v69, v[60:63] offset:7680")
    a("s_mov_b64 exec, -1")
    a("s_waitcnt lgkmcnt(0)")
    ts(a, 4, "ln")
    a("s_barrier")
    ts(a, 5, "ln")
    a("ds_read_b64_tr_b16 v[12:13], v102 offset:7680")
    a(f"ds_read_b64_tr_b16 v[14:15], v102 offset:{7680+3840}")
    a("ds_read_b128 v[16:19], v103")
    a("s_waitcnt lgkmcnt(1)")
    vm.issue("lst", f"buffer_store_dwordx4 v[12:15], v104, s[{rWS}:{rWS+3}], s12 offen {SC}")
    a("s_waitcnt lgkmcnt(0)")
    vm.issue("lst", f"buffer_store_dwordx4 v[16:19], v106, s[{rWS}:{rWS+3}], s11 offen {SC}")
    vm.wait("cl")
    vm.issue("lst", f"buffer_store_dwordx4 v[88:91], v85, s[{rWS}:{rWS+3}], s9 offen {SC}")
    tag_fetch(a, vm)
    ts(a, 2)
    ts(a, 6, "ln")


def s1_signal(a, vm):
    vm.wait("lst")
    a("s_barrier")
    tag_get(a, vm)
    signal(a, WS_F1, sB_)


def helper_path(a, ops):
    a.label("L_helper")
    hv = VM(a)
    hv.ops = list(ops)
    a(f"s_sub_u32 s{sW}, s{sW}, 4")
    if OPT["warm_after"]:
        hv.wait("lst")
        a("s_barrier")
    if OPT["pf_w1"]:
        srd(a, rD, pW1, S * F * 2)
        a(f"s_mul_i32 s74, s{sX}, 7")
        a("s_lshr_b32 s74, s74, 1")
        a("s_lshl_b32 s74, s74, 7")
        warm_lines(a, hv, rD, 3584, 6, 74, "pf")
        a(f"s_cmp_lt_u32 s{sJ}, 7")
        a(f"s_mov_b32 s51, {OOB}")
        a(f"s_cselect_b32 s50, {25*64*3584}, s51")
        a(f"s_lshl_b32 s51, s{sJ}, 2")
        a(f"s_add_u32 s51, s51, s{sW}")
        a(f"s_mul_i32 s51, s51, {16*3584}")
        a("s_add_u32 s50, s50, s51")
        a("s_add_u32 s50, s50, s74")
        hv.issue("pf", f"buffer_load_dword v255, v254, s[{rD}:{rD+3}], s50 offen")
    if OPT["w2_s1"]:
        srd(a, rD, pW2, F * S * 2)
        a(f"s_lshl_b32 s74, s{sX}, 9")
        warm_lines(a, hv, rD, 4096, 6, 74, "pf")
        a(f"s_cmp_lt_u32 s{sJ}, 3")
        a(f"s_mov_b32 s51, {OOB}")
        a(f"s_cselect_b32 s50, {25*64*4096}, s51")
        a(f"s_lshl_b32 s51, s{sJ}, 2")
        a(f"s_add_u32 s51, s51, s{sW}")
        a(f"s_mul_i32 s51, s51, {16*4096}")
        a("s_add_u32 s50, s50, s51")
        a("s_add_u32 s50, s50, s74")
        hv.issue("pf", f"buffer_load_dword v255, v254, s[{rD}:{rD+3}], s50 offen")
    if not OPT["warm_after"]:
        hv.wait("lst")
        a("s_barrier")
    ts_end(a, "L_ts2")
    a("s_endpgm")


def role_G1(a, vm):
    nt, mt = sT0, sT1
    a(f"s_lshl_b32 s{sRing}, s{sW}, 13")
    a(f"s_mul_i32 s{sA}, s{sW}, {512*3584}")
    a(f"s_lshl_b32 s50, s{nt}, 7")
    a(f"s_add_u32 s{sA}, s{sA}, s50")
    a(f"s_lshl_b32 s{sBo}, s{mt}, 8")
    a(f"s_lshl_b32 s50, s{sW}, 5")
    a(f"s_add_u32 s{sBo}, s{sBo}, s50")
    a(f"s_lshl_b32 s{sBo}, s{sBo}, 10")
    a(f"s_add_u32 s{sBo}, s{sBo}, {WS_HA}")
    a_lane_addr(a, 3584, True)
    srd(a, rA, pW1, S * F * 2)
    a("v_lshlrev_b32 v4, 4, v1")
    a("v_add_u32 v5, 131072, v4")
    a("v_lshrrev_b32 v12, 5, v1")
    a("v_lshlrev_b32 v12, 4, v12")
    a(f"s_lshl_b32 s50, s{nt}, 7")
    a(f"s_lshl_b32 s51, s{sW}, 5")
    a("s_add_u32 s50, s50, s51")
    a("v_add_u32 v12, s50, v12")
    vm.issue("b1", f"global_load_dwordx4 v[8:11], v12, s[{pB1}:{pB1+1}]")
    a("v_lshlrev_b32 v13, 4, v1")
    red_addr(a, [16, 17, 18], [19, 20, 21], 13)

    def dma(slot, j):
        a(f"s_add_u32 m0, s{sRing}, {slot*2048}")
        a("s_nop 0")
        vm.issue(("s", j), f"buffer_load_dwordx4 v2, s[{rA}:{rA+3}], s{sA} offen lds")
        vm.issue(("s", j), f"buffer_load_dwordx4 v3, s[{rA}:{rA+3}], s{sA} offen offset:1024 lds")

    def bload(slot, j):
        r = BR[slot]
        vm.issue(("s", j), f"buffer_load_dwordx4 v[{r}:{r+3}], v4, s[{rWS}:{rWS+3}], s{sBo} offen {LSC}")
        vm.issue(("s", j), f"buffer_load_dwordx4 v[{r+4}:{r+7}], v5, s[{rWS}:{rWS+3}], s{sBo} offen {LSC}")

    advA = lambda: a(f"s_add_u32 s{sA}, s{sA}, {16*3584}")
    advB = lambda: a(f"s_add_u32 s{sBo}, s{sBo}, 1024")
    ts(a, 4)
    s1_signal(a, vm)
    ts(a, 3)
    npre = OPT["g1_npre"]
    for j in range(npre):
        dma(j, j)
        advA()
    if OPT["s1_wait"]:
        vm.wait(("s", 0))
        a(f"s_sleep {OPT['s1_wait']}")
    poll_issue(a, vm, WS_F1, 256, 240, 244)
    poll_check(a, vm, 256, 240, 244)
    ts(a, 1)
    for j in range(4):
        if j >= npre:
            dma(j, j)
            advA()
        bload(j, j)
        advB()
    ts(a, 5)
    tc(a, 1, "clk")
    ts(a, 2, "clk")
    steps = [dict(dma=dma, bload=bload, advA=advA, advB=advB, tr=lambda st, sl: tr_rows(a, st, sl)) for _ in range(32)]
    stream_gemm(a, vm, steps, AS, BR, ACC, {}, pre_all=True)
    ts(a, 6)
    tc(a, 3, "clk")
    ts(a, 4, "clk")
    ts(a, 1, "g1e")
    if OPT["w2_at"] == "g1end":
        w2_warm(a, vm)
    a("s_nop 15")
    red_write(a, ACC, [16, 17, 18])
    for q in range(4):
        unpack(a, 8 + q, 208 + 2 * q, 209 + 2 * q)
    a("s_waitcnt lgkmcnt(0)")
    a("s_barrier")
    ts(a, 2, "g1e")
    red_read_add(a, ACC, [19, 20, 21], 160)
    ts(a, 3, "g1e")
    a(f"s_mov_b32 s50, {fhex(GELU_C0)}")
    a(f"s_mov_b32 s51, {fhex(GELU_C1)}")
    a("v_mov_b32 v22, s50")
    a("v_mov_b32 v23, s50")
    a("v_mov_b32 v24, s51")
    a("v_mov_b32 v25, s51")
    a("v_mov_b32 v26, 1.0")
    a("v_mov_b32 v27, 1.0")
    for dj in range(2):
        c = ACC[0][dj]
        t = 160 + 16 * dj
        pr = lambda b, q: f"v[{b+2*q}:{b+2*q+1}]"
        if OPT["mimic_u"]:
            for q in range(4):
                a(f"v_cvt_pk_bf16_f32 v{t+q}, v{c+2*q}, v{c+2*q+1}")
            for q in range(4):
                unpack(a, t + q, c + 2 * q, c + 2 * q + 1)
        for q in range(4):
            a(f"v_pk_add_f32 {pr(c,q)}, {pr(c,q)}, v[{208+2*q}:{209+2*q}]")
        if OPT["mimic_u"]:
            for q in range(4):
                a(f"v_cvt_pk_bf16_f32 v{t+q}, v{c+2*q}, v{c+2*q+1}")
            for q in range(4):
                unpack(a, t + q, c + 2 * q, c + 2 * q + 1)
        for q in range(4):
            a(f"v_pk_mul_f32 {pr(t,q)}, {pr(c,q)}, {pr(c,q)}")
        for q in range(4):
            a(f"v_pk_fma_f32 {pr(t,q)}, {pr(t,q)}, v[24:25], v[22:23]")
        for q in range(4):
            a(f"v_pk_mul_f32 {pr(t,q)}, {pr(t,q)}, {pr(c,q)}")
        for j in range(8):
            a(f"v_exp_f32 v{t+j}, v{t+j}")
        for q in range(4):
            a(f"v_pk_add_f32 {pr(t,q)}, {pr(t,q)}, v[26:27]")
        for j in range(8):
            a(f"v_rcp_f32 v{t+j}, v{t+j}")
        a("s_nop 0")
        for q in range(4):
            a(f"v_pk_mul_f32 {pr(c,q)}, {pr(c,q)}, {pr(t,q)}")
        for q in range(4):
            a(f"v_cvt_pk_bf16_f32 v{t+8+q}, v{c+2*q}, v{c+2*q+1}")
        if dj == 0:
            a(f"s_mul_i32 s74, s{mt}, 336")
            a(f"s_lshl_b32 s51, s{nt}, 2")
            a("s_add_u32 s74, s74, s51")
            a(f"s_add_u32 s74, s74, s{sW}")
            a("s_lshl_b32 s74, s74, 10")
            a(f"s_add_u32 s74, s74, {WS_WB}")
        else:
            a(f"s_add_u32 s74, s74, {168*1024}")
        vm.issue("ust", f"buffer_store_dwordx4 v[{t+8}:{t+11}], v13, s[{rWS}:{rWS+3}], s74 offen {SC}")
    if OPT["w2_at"] == "g1st":
        w2_warm(a, vm)
    a(f"s_lshl_b32 s74, s{mt}, 5")
    a(f"s_add_u32 s74, s74, s{nt}")
    ts(a, 4, "g1e")
    vm.wait("ust")
    a("s_barrier")
    signal(a, WS_F3, 74)
    ts(a, 7)
    ts(a, 5, "g1e")


def w2_warm(a, vm):
    if not OPT["pf_w2"]:
        return
    srd(a, rD, pW2, F * S * 2)
    a(f"s_lshl_b32 s72, s{sX}, 9")
    warm_lines(a, vm, rD, 4096, 6, 72, "pf")


def role_Bu(a, vm):
    cj, pg = sT0, sT1
    a(f"s_mov_b32 s{cj}, s{sX}")
    a(f"s_sub_u32 s{pg}, s{sJ}, 25")
    a(f"s_and_b32 s72, s{sW}, 3")
    a("s_cmp_lt_u32 s72, 2")
    a(f"s_cselect_b32 s{rB}, s{pBRE}, s{pBIM}")
    a(f"s_cselect_b32 s{rB+1}, s{pBRE+1}, s{pBIM+1}")
    a(f"s_and_b32 s{rB+1}, s{rB+1}, 0xffff")
    a(f"s_mov_b32 s{rB+2}, {P*D*2}")
    a(f"s_mov_b32 s{rB+3}, 0x20000")
    a("v_lshrrev_b32 v4, 3, v1")
    a("v_lshrrev_b32 v5, 1, v4")
    a("v_and_b32 v6, 7, v1")
    a("v_xor_b32 v6, v6, v5")
    a("v_mul_u32_u24 v4, 896, v4")
    a("v_lshl_add_u32 v22, v6, 4, v4")
    a("v_xor_b32 v6, 4, v6")
    a("v_lshl_add_u32 v23, v6, 4, v4")
    a(f"s_lshl_b32 s73, s{pg}, 6")
    a("s_and_b32 s50, s72, 1")
    a("s_lshl_b32 s50, s50, 5")
    a("s_add_u32 s73, s73, s50")
    a(f"s_lshr_b32 s51, s{sW}, 2")
    a("s_lshl_b32 s50, s51, 4")
    a("s_add_u32 s73, s73, s50")
    a("s_mul_i32 s73, s73, 896")
    a("s_lshl_b32 s100, s72, 12")
    a("s_lshl_b32 s50, s51, 11")
    a("s_add_u32 s100, s100, s50")
    a(f"s_add_u32 s100, s100, {L_SLOT}")
    a("v_and_b32 v2, 31, v1")
    a(f"s_lshl_b32 s50, s{pg}, 6")
    a("v_add_u32 v3, s50, v2")
    a("v_lshlrev_b32 v3, 1, v3")
    for pb in range(2):
        vm.issue("par", f"global_load_ushort v{14+3*pb}, v3, s[{pLRE}:{pLRE+1}] offset:{64*pb}")
        vm.issue("par", f"global_load_ushort v{15+3*pb}, v3, s[{pLIM}:{pLIM+1}] offset:{64*pb}")
        vm.issue("par", f"global_load_ushort v{16+3*pb}, v3, s[{pLDT}:{pLDT+1}] offset:{64*pb}")

    def b_dma(kc, e):
        a(f"s_add_u32 m0, s100, {kc*16384 + e*1024}")
        a(f"s_add_u32 s15, s73, {kc*128 + e*8*896}")
        vm.issue("B", f"buffer_load_dwordx4 v{22+e}, s[{rB}:{rB+3}], s15 offen lds")
    order = [(kc, e) for kc in range(7) for e in range(2)]
    for kc, e in order[:OPT['bu_pre']]:
        b_dma(kc, e)
    s1_signal(a, vm)
    ts(a, 7)
    for kc, e in order[OPT['bu_pre']:]:
        b_dma(kc, e)
    a("v_and_b32 v4, 0x13, v1")
    a("v_lshrrev_b32 v5, 1, v1")
    a("v_and_b32 v5, 4, v5")
    a("v_or_b32 v4, v4, v5")
    a("v_lshlrev_b32 v5, 1, v1")
    a("v_and_b32 v5, 8, v5")
    a("v_or_b32 v4, v4, v5")
    a("v_lshlrev_b32 v4, 4, v4")
    a("v_lshrrev_b32 v5, 5, v1")
    a("v_lshl_add_u32 v24, v5, 9, v4")
    a("v_lshrrev_b32 v4, 1, v2")
    a("v_and_b32 v4, 7, v4")
    a("v_xor_b32 v4, v4, v5")
    a("v_lshlrev_b32 v6, 7, v2")
    a(f"s_lshl_b32 s50, s{pg}, 14")
    a(f"s_add_u32 s50, s50, {L_SLOT}")
    a("v_add_u32 v6, s50, v6")
    for q4 in range(4):
        a(f"v_xor_b32 v7, {2*q4}, v4")
        a(f"v_lshl_add_u32 v{26+q4}, v7, 4, v6")
    a(f"s_lshl_b32 s101, s{cj}, 3")
    a(f"s_add_u32 s101, s101, s{sW}")
    a("s_mul_i32 s101, s101, 28672")
    a(f"s_add_u32 s101, s101, {WS_XNA}")
    vm.wait("par")
    LB = lambda pb: 96 + 12 * pb
    for pb in range(2):
        lre, lim, ldt = 14 + 3 * pb, 15 + 3 * pb, 16 + 3 * pb
        L = LB(pb)
        cr, ci = L + 8, L + 9
        lam_bar(a, lre, lim, ldt, L, L + 1, 4, 5, 6)
        a(f"v_add_f32 v7, -1.0, v{L}")
        a(f"v_mul_f32 v8, v{lre}, v{lre}")
        a(f"v_fmac_f32 v8, v{lim}, v{lim}")
        a("v_rcp_f32 v8, v8")
        a(f"v_mul_f32 v{cr}, v7, v{lre}")
        a(f"v_fmac_f32 v{cr}, v{L+1}, v{lim}")
        a(f"v_mul_f32 v{ci}, v{L+1}, v{lre}")
        a(f"v_fma_f32 v{ci}, -v7, v{lim}, v{ci}")
        a("v_add_f32 v8, v8, v8")
        a(f"v_mul_f32 v{cr}, v{cr}, v8")
        a(f"v_mul_f32 v{ci}, v{ci}, v8")
        a(f"v_mov_b32 v4, v{L}")
        a(f"v_mov_b32 v5, v{L+1}")
        for k in range(8):
            csquare(a, 4, 5, 6, 7)
            dst = {2: L + 2, 4: L + 4, 7: L + 6}.get(k)
            if dst:
                a(f"v_mov_b32 v{dst}, v4")
                a(f"v_mov_b32 v{dst+1}, v5")
    vm.wait("B")
    poll_issue(a, vm, WS_F1, 256, 240, 244)
    poll_check(a, vm, 256, 240, 244)
    ts(a, 1)
    AR_ = [64 + 4 * i for i in range(8)]
    LA = OPT["bu_lead"] + 1

    def kc_of(i, dst):
        a(f"s_add_u32 s{dst}, s{pg}, {i}")
        a(f"s_cmp_ge_u32 s{dst}, 7")
        a("s_cselect_b32 s51, 7, 0")
        a(f"s_sub_u32 s{dst}, s{dst}, s51")

    def a_load(g):
        i, q4 = divmod(g, 4)
        if q4 == 0:
            kc_of(i, 14)
            a("s_lshl_b32 s14, s14, 12")
            a("s_add_u32 s14, s14, s101")
        r = AR_[g % 8]
        vm.issue(("a", g), f"buffer_load_dwordx4 v[{r}:{r+3}], v24, s[{rWS}:{rWS+3}], s14 offen offset:{q4*1024} {LSC}")
    FS = [32, 48]
    ACCB = lambda b: 128 + 16 * b

    def fread(g):
        st = FS[g & 1]
        q4 = g & 3
        for b in range(4):
            a(f"ds_read_b128 v[{st+4*b}:{st+4*b+3}], v{26+q4} offset:{b*4096}")

    def next_chunk(i):
        kc_of(i, 15)
        a("s_cmp_eq_u32 s15, 0")
        a(f"s_mov_b32 s51, {-6*16384 & 0xffffffff}")
        a("s_cselect_b32 s15, s51, 16384")
        for q in range(4):
            a(f"v_add_u32 v{26+q}, s15, v{26+q}")
    NG = 28
    for g in range(LA):
        a_load(g)
    fread(0)
    for g in range(NG):
        vm.wait(("a", g), "lgkmcnt(0)")
        if "war" in OPT["exp"]:
            a("s_nop 15")
            a("s_nop 15")
        if g + 1 < NG:
            if (g + 1) % 4 == 0:
                next_chunk((g + 1) // 4)
            fread(g + 1)
        st = FS[g & 1]
        r = AR_[g % 8]
        for b in range(4):
            c = ACCB(b)
            src = "0" if g == 0 else f"v[{c}:{c+15}]"
            a(f"v_mfma_f32_32x32x16_bf16 v[{c}:{c+15}], v[{r}:{r+3}], v[{st+4*b}:{st+4*b+3}], {src}")
            if b == 1 and g + LA < NG:
                a_load(g + LA)
    ts(a, 3)
    if "bar" in OPT["exp"]:
        a("s_barrier")
    if "slp" in OPT["exp"]:
        a("s_sleep 8")
    a("v_and_b32 v27, 31, v1")
    a("v_lshlrev_b32 v24, 4, v27")
    a("v_lshrrev_b32 v26, 5, v1")
    a("v_mul_u32_u24 v26, 7168, v26")
    a("v_add_u32 v24, v24, v26")
    a("v_lshlrev_b32 v25, 3, v27")
    a(f"v_add_u32 v25, {L_AGG}, v25")
    a(f"s_lshl_b32 s{sA0}, s{cj}, 5")
    a(f"s_lshl_b32 s50, s{sW}, 2")
    a(f"s_add_u32 s{sA0}, s{sA0}, s50")
    a(f"s_mul_i32 s{sA0}, s{sA0}, 7168")
    a(f"s_lshl_b32 s50, s{pg}, 10")
    a(f"s_add_u32 s{sA0}, s{sA0}, s50")
    a(f"s_add_u32 s{sA0}, s{sA0}, {WS_HO}")
    a("s_nop 7")
    for _ in range(OPT["bu_nops"]):
        a("s_nop 15")
    HX, HY = 192, 194
    AG = lambda pb: 196 + 8 * pb
    for pb in range(2):
        L = LB(pb)
        C = f"v[{L+8}:{L+9}]"
        re, im = ACCB(pb), ACCB(2 + pb)
        OA = [212, 214]
        for h16 in range(2):
            for q in range(4):
                r = 8 * h16 + 2 * q
                R = f"v[{re+r}:{re+r+1}]"
                I = f"v[{im+r}:{im+r+1}]"
                if "pk" not in OPT["exp"]:
                    for e in range(2):
                        a(f"v_mul_f32 v{216+e}, v{im+r+e}, v{L+9}")
                        a(f"v_mul_f32 v{218+e}, v{re+r+e}, v{L+9}")
                    for e in range(2):
                        a(f"v_fma_f32 v{re+r+e}, v{re+r+e}, v{L+8}, -v{216+e}")
                        a(f"v_fma_f32 v{im+r+e}, v{im+r+e}, v{L+8}, v{218+e}")
                else:
                  a(f"v_pk_mul_f32 v[216:217], {I}, {C} op_sel:[0,1] op_sel_hi:[1,1]")
                  a(f"v_pk_mul_f32 v[218:219], {R}, {C} op_sel:[0,1] op_sel_hi:[1,1]")
                if "n1" in OPT["exp"]:
                    a("s_nop 1")
                if "pk" in OPT["exp"]:
                    a(f"v_pk_fma_f32 {R}, {R}, {C}, v[216:217] op_sel_hi:[1,0,1] neg_lo:[0,0,1] neg_hi:[0,0,1]")
                    a(f"v_pk_fma_f32 {I}, {I}, {C}, v[218:219] op_sel_hi:[1,0,1]")
                if "n2" in OPT["exp"]:
                    a("s_nop 1")
                if q == 0:
                    cfma(a, HX, HX + 1, L, L + 1, re + r, im + r, re + r + 1, im + r + 1)
                else:
                    cfma(a, HY, HY + 1, L, L + 1, HX, HX + 1, re + r, im + r)
                    dst = OA[h16] if q == 3 else HX
                    cfma(a, dst, dst + 1, L, L + 1, HY, HY + 1, re + r + 1, im + r + 1)
        A0, A1, A2, A3 = AG(pb), AG(pb) + 2, AG(pb) + 4, AG(pb) + 6
        for src, x, y in ((OA[0], A0, A1), (OA[1], A2, A3)):
            for e in range(2):
                a(f"v_mov_b32 v{x+e}, v{src+e}")
                a(f"v_mov_b32 v{y+e}, v{src+e}")
        a("s_nop 1")
        for x, y in ((A0, A1), (A2, A3)):
            for e in range(2):
                a(f"v_permlane32_swap_b32 v{x+e}, v{y+e}")
        a("s_nop 0")
        cfma(a, HX, HX + 1, L + 2, L + 3, A0, A0 + 1, A1, A1 + 1)
        cfma(a, HY, HY + 1, L + 2, L + 3, HX, HX + 1, A2, A2 + 1)
        cfma(a, HX, HX + 1, L + 2, L + 3, HY, HY + 1, A3, A3 + 1)
        a(f"s_lshl_b32 s50, s{sW}, 9")
        a("v_add_u32 v26, s50, v25")
        a(f"ds_write_b64 v26, v[{HX}:{HX+1}] offset:{pb*256}")
    a("s_waitcnt lgkmcnt(0)")
    a("s_barrier")
    ts(a, 4)
    a("v_lshlrev_b32 v26, 3, v1")
    a(f"v_add_u32 v26, {L_AGG}, v26")
    W = [32 + 2 * w for w in range(8)]
    for w in range(8):
        a(f"ds_read_b64 v[{W[w]}:{W[w]+1}], v26 offset:{w*512}")
    a("v_cmp_gt_u32 vcc, 32, v1")
    a("s_nop 1")
    M32, M256 = 48, 50
    for e in range(2):
        a(f"v_cndmask_b32 v{M32+e}, v{LB(1)+4+e}, v{LB(0)+4+e}, vcc")
        a(f"v_cndmask_b32 v{M256+e}, v{LB(1)+6+e}, v{LB(0)+6+e}, vcc")
    lno, lgo = uid("L_nolb"), uid("L_lbgo")
    a("s_waitcnt lgkmcnt(0)")
    a(f"s_cmp_lg_u32 s{sW}, 0")
    a(f"s_cbranch_scc1 {lno}")
    cur, oth = 52, 54
    a(f"v_mov_b32 v{cur}, v{W[0]}")
    a(f"v_mov_b32 v{cur+1}, v{W[0]+1}")
    for w in range(1, 8):
        cfma(a, oth, oth + 1, M32, M32 + 1, cur, cur + 1, W[w], W[w] + 1)
        cur, oth = oth, cur
    a(f"v_mov_b32 v56, v{cur}")
    a(f"v_mov_b32 v57, s{sN}")
    a(f"v_mov_b32 v58, v{cur+1}")
    a(f"v_mov_b32 v59, s{sN}")
    a("v_lshlrev_b32 v28, 4, v1")
    a(f"s_lshl_b32 s50, s{pg}, 3")
    a(f"s_add_u32 s50, s50, s{cj}")
    a("s_lshl_b32 s50, s50, 10")
    a(f"s_add_u32 s8, s50, {WS_AGG}")
    a(f"buffer_store_dwordx4 v[56:59], v28, s[{rWS}:{rWS+3}], s8 offen sc1")
    LBK = 64
    a("s_mov_b32 s10, 0")
    lsp = uid("L_lbs")
    a.label(lsp)
    for jj in range(7):
        a(f"s_cmp_ge_u32 s{cj}, {7-jj}")
        a(f"s_cselect_b32 s50, s8, {OOB}")
        a(f"s_sub_u32 s50, s50, {(7-jj)*1024}")
        a(f"buffer_load_dwordx4 v[{LBK+4*jj}:{LBK+4*jj+3}], v28, s[{rWS}:{rWS+3}], s50 offen sc1")
    a("s_waitcnt vmcnt(0)")
    a("v_mov_b32 v29, 0")
    for jj in range(7):
        a(f"s_cmp_ge_u32 s{cj}, {7-jj}")
        a(f"s_cselect_b32 s50, s{sN}, 0")
        a(f"v_xor_b32 v{LBK+4*jj+1}, s50, v{LBK+4*jj+1}")
        a(f"v_xor_b32 v{LBK+4*jj+3}, s50, v{LBK+4*jj+3}")
        a(f"v_or3_b32 v29, v29, v{LBK+4*jj+1}, v{LBK+4*jj+3}")
    a("v_cmp_ne_u32 vcc, 0, v29")
    a("s_add_u32 s10, s10, 1")
    a(f"s_cmp_ge_u32 s10, {SPIN_MAX}")
    a(f"s_cbranch_scc1 {lgo}")
    a(f"s_cbranch_vccz {lgo}")
    a(f"s_sleep {POLL_SLEEP}")
    a(f"s_branch {lsp}")
    a.label(lgo)
    cur, oth = 52, 54
    a(f"v_mov_b32 v{cur}, v{LBK}")
    a(f"v_mov_b32 v{cur+1}, v{LBK+2}")
    for jj in range(1, 7):
        cfma(a, oth, oth + 1, M256, M256 + 1, cur, cur + 1, LBK + 4 * jj, LBK + 4 * jj + 2)
        cur, oth = oth, cur
    a(f"ds_write_b64 v26, v[{cur}:{cur+1}] offset:4096")
    a("s_waitcnt lgkmcnt(0)")
    a.label(lno)
    a("s_barrier")
    G = 52
    a(f"ds_read_b64 v[{G}:{G+1}], v26 offset:4096")
    a("s_waitcnt lgkmcnt(0)")
    for w in range(1, 8):
        cfma(a, 54, 55, M32, M32 + 1, G, G + 1, W[w - 1], W[w - 1] + 1)
        a(f"s_cmp_ge_u32 s{sW}, {w}")
        a("s_cselect_b64 s[50:51], -1, 0")
        a(f"v_cndmask_b32 v{G}, v{G}, v54, s[50:51]")
        a(f"v_cndmask_b32 v{G+1}, v{G+1}, v55, s[50:51]")
    H0 = [56, 58]
    for e in range(2):
        a(f"v_mov_b32 v{H0[0]+e}, v{G+e}")
        a(f"v_mov_b32 v{H0[1]+e}, v{G+e}")
    a("s_nop 1")
    for e in range(2):
        a(f"v_permlane32_swap_b32 v{H0[0]+e}, v{H0[1]+e}")
    a("v_cmp_gt_u32 vcc, 32, v1")
    a("s_nop 0")
    T0 = 64
    for pb in range(2):
        L = LB(pb)
        re, im = ACCB(pb), ACCB(2 + pb)
        A0, A1, A2 = AG(pb), AG(pb) + 2, AG(pb) + 4
        g0 = H0[pb]
        C1, C2, C3 = 32, 34, 36
        cfma(a, C1, C1 + 1, L + 2, L + 3, g0, g0 + 1, A0, A0 + 1)
        cfma(a, C2, C2 + 1, L + 2, L + 3, C1, C1 + 1, A1, A1 + 1)
        cfma(a, C3, C3 + 1, L + 2, L + 3, C2, C2 + 1, A2, A2 + 1)
        CI = [38, 40]
        for e in range(2):
            a(f"v_cndmask_b32 v{CI[0]+e}, v{C1+e}, v{g0+e}, vcc")
            a(f"v_cndmask_b32 v{CI[1]+e}, v{C3+e}, v{C2+e}, vcc")
        HE = [[42, 44], [46, 48]]
        TP = T0 + 16 * pb
        for e in range(8):
            for h16 in range(2):
                r = 8 * h16 + e
                src = CI[h16] if e == 0 else HE[h16][(e - 1) & 1]
                dst = HE[h16][e & 1]
                cfma(a, dst, dst + 1, L, L + 1, src, src + 1, re + r, im + r)
            if e & 1:
                for h16 in range(2):
                    ev, od = HE[h16]
                    a(f"v_cvt_pk_bf16_f32 v{TP+8*h16+(e>>1)}, v{ev}, v{od}")
                    a(f"v_cvt_pk_bf16_f32 v{TP+8*h16+4+(e>>1)}, -v{ev+1}, -v{od+1}")
        for h16 in range(2):
            t = TP + 8 * h16
            a(f"s_add_u32 s50, s{sA0}, {2*h16*7168 + pb*512}")
            a(f"s_add_u32 s51, s50, {256*7168}")
            vm.issue("bst", f"buffer_store_dwordx4 v[{t}:{t+3}], v24, s[{rWS}:{rWS+3}], s50 offen {SC}")
            vm.issue("bst", f"buffer_store_dwordx4 v[{t+4}:{t+7}], v24, s[{rWS}:{rWS+3}], s51 offen {SC}")
    ts(a, 5)
    a(f"s_lshl_b32 s74, s{cj}, 4")
    a(f"s_add_u32 s74, s74, s{pg}")
    vm.wait("bst")
    a("s_barrier")
    signal(a, WS_F4, 74)
    ts(a, 6)


def phase_G2(a):
    vm = VM(a)
    st, dt = sT0, sT1
    a(f"s_lshl_b32 s{sRing}, s{sW}, 13")
    a(f"s_lshr_b32 s{sA2}, s{sW}, 1")
    a(f"s_lshl_b32 s{sA2}, s{sA2}, 8")
    a(f"s_lshl_b32 s50, s{st}, 3")
    a(f"s_add_u32 s{sA2}, s{sA2}, s50")
    a(f"s_mul_i32 s{sA2}, s{sA2}, 7168")
    a(f"s_and_b32 s50, s{sW}, 1")
    a("s_mul_i32 s50, s50, 3584")
    a(f"s_add_u32 s{sA2}, s{sA2}, s50")
    a(f"s_add_u32 s{sA2}, s{sA2}, {WS_HO}")
    a(f"s_mul_i32 s{sB2}, s{dt}, 336")
    a(f"s_mul_i32 s50, s{sW}, 14")
    a(f"s_add_u32 s{sB2}, s{sB2}, s50")
    a(f"s_add_u32 s{sB2}, s{sB2}, 112")
    a(f"s_lshl_b32 s{sB2}, s{sB2}, 10")
    a(f"s_add_u32 s{sB2}, s{sB2}, {WS_WB}")
    a(f"s_mov_b32 s34, s{sA2}")
    a(f"s_mov_b32 s35, s{sB2}")
    a(f"s_and_b32 s50, s{st}, 3")
    a("s_mul_i32 s50, s50, 7")
    a("s_lshr_b32 s50, s50, 1")
    a(f"s_lshl_b32 s51, s{dt}, 1")
    a("s_add_u32 s50, s50, s51")
    a("s_cmp_ge_u32 s50, 14")
    a("s_cselect_b32 s51, 14, 0")
    a("s_sub_u32 s50, s50, s51")
    if not OPT["rot_c"]:
        a("s_mov_b32 s50, 0")
    a("s_lshl_b32 s51, s50, 8")
    a(f"s_add_u32 s{sA2}, s{sA2}, s51")
    a("s_lshl_b32 s51, s50, 10")
    a(f"s_add_u32 s{sB2}, s{sB2}, s51")
    a(f"s_add_u32 s{sP1e}, s35, {14*1024}")
    a(f"s_and_b32 s50, s{st}, 3")
    a("s_mul_i32 s50, s50, 7")
    a(f"s_lshl_b32 s51, s{dt}, 2")
    a("s_add_u32 s50, s50, s51")
    a("s_cmp_ge_u32 s50, 28")
    a("s_cselect_b32 s51, 28, 0")
    a("s_sub_u32 s72, s50, s51")
    if not OPT["rot_u"]:
        a("s_mov_b32 s72, 0")
    a(f"s_mul_i32 s{sA0}, s{sW}, {448*4096}")
    a(f"s_lshl_b32 s50, s{st}, 7")
    a(f"s_add_u32 s{sA0}, s{sA0}, s50")
    a("s_lshl_b32 s50, s72, 16")
    a(f"s_add_u32 s{sA}, s{sA0}, s50")
    a(f"s_mul_i32 s{sB0}, s{dt}, 336")
    a(f"s_mul_i32 s50, s{sW}, 28")
    a(f"s_add_u32 s{sB0}, s{sB0}, s50")
    a(f"s_lshl_b32 s{sB0}, s{sB0}, 10")
    a(f"s_add_u32 s{sB0}, s{sB0}, {WS_WB}")
    a("s_lshl_b32 s50, s72, 10")
    a(f"s_add_u32 s{sBo}, s{sB0}, s50")
    a(f"s_add_u32 s{sBe}, s{sB0}, {28*1024}")
    a_lane_addr(a, 4096, False)
    a("v_lshrrev_b32 v8, 3, v1")
    a("v_mul_u32_u24 v8, 7168, v8")
    a("v_lshrrev_b32 v9, 4, v1")
    a("v_and_b32 v9, 1, v9")
    a("v_lshlrev_b32 v9, 2, v9")
    a("v_and_b32 v10, 7, v1")
    a("v_xor_b32 v9, v9, v10")
    a("v_lshl_add_u32 v8, v9, 4, v8")
    a("v_lshrrev_b32 v10, 1, v14")
    a("v_and_b32 v10, 1, v10")
    a("v_lshlrev_b32 v10, 2, v10")
    a("v_xor_b32 v10, v10, v15")
    a("v_lshlrev_b32 v10, 4, v10")
    a("v_lshl_add_u32 v10, v14, 7, v10")
    a("v_lshl_add_u32 v10, v5, 10, v10")
    a("v_and_b32 v11, 1, v1")
    a("v_lshl_add_u32 v10, v11, 3, v10")
    a(f"v_add_u32 v10, s{sRing}, v10")
    a("v_xor_b32 v11, 64, v10")
    a("v_xor_b32 v12, 512, v10")
    a("v_xor_b32 v13, 512, v11")
    a("v_lshlrev_b32 v4, 4, v1")
    a(f"v_add_u32 v5, {168*1024}, v4")
    srd(a, rA, pW2, F * S * 2)
    srd(a, rB, pX, S * D * 2)
    srd(a, rC, pOUT, S * D * 4)
    a(f"s_add_u32 s100, s{sA0}, {28*65536}")
    a(f"s_add_u32 s101, s34, {14*256}")

    def dma1(slot, j):
        a(f"s_add_u32 m0, s{sRing}, {slot*2048}")
        a("s_nop 0")
        vm.issue(("s", j), f"buffer_load_dwordx4 v8, s[{rWS}:{rWS+3}], s{sA2} offen {LSC} lds")
        a("s_add_u32 m0, m0, 896")
        a("s_nop 0")
        vm.issue(("s", j), f"buffer_load_dwordx4 v8, s[{rWS}:{rWS+3}], s{sA2} offen offset:128 {LSC} lds")

    def bl(reg):
        def f(slot, j):
            r = BR[slot]
            vm.issue(("s", j), f"buffer_load_dwordx4 v[{r}:{r+3}], v4, s[{rWS}:{rWS+3}], s{reg} offen {LSC}")
            vm.issue(("s", j), f"buffer_load_dwordx4 v[{r+4}:{r+7}], v5, s[{rWS}:{rWS+3}], s{reg} offen {LSC}")
        return f

    def tr1(s_, slot):
        r = AS[s_]
        o = slot * 2048
        for e in range(4):
            a(f"ds_read_b64_tr_b16 v[{r+2*e}:{r+2*e+1}], v{10+e} offset:{o}")

    def dma2(slot, j):
        a(f"s_add_u32 m0, s{sRing}, {slot*2048}")
        a("s_nop 0")
        vm.issue(("s", j), f"buffer_load_dwordx4 v2, s[{rA}:{rA+3}], s{sA} offen {OPT['nt_w']} lds")
        vm.issue(("s", j), f"buffer_load_dwordx4 v3, s[{rA}:{rA+3}], s{sA} offen offset:1024 {OPT['nt_w']} lds")

    def advA2():
        a(f"s_add_u32 s{sA}, s{sA}, {16*4096}")
        a(f"s_cmp_eq_u32 s{sA}, s100")
        a(f"s_cselect_b32 s{sA}, s{sA0}, s{sA}")

    def advB2():
        a(f"s_add_u32 s{sBo}, s{sBo}, 1024")
        a(f"s_cmp_eq_u32 s{sBo}, s{sBe}")
        a(f"s_cselect_b32 s{sBo}, s{sB0}, s{sBo}")

    def advA1():
        a(f"s_add_u32 s{sA2}, s{sA2}, 256")
        a(f"s_cmp_eq_u32 s{sA2}, s101")
        a(f"s_cselect_b32 s{sA2}, s34, s{sA2}")

    def advB1():
        a(f"s_add_u32 s{sB2}, s{sB2}, 1024")
        a(f"s_cmp_eq_u32 s{sB2}, s{sP1e}")
        a(f"s_cselect_b32 s{sB2}, s35, s{sB2}")

    steps = [dict(dma=dma2, bload=bl(sBo), advA=advA2, advB=advB2, tr=lambda s_, sl: tr_rows(a, s_, sl))
             for _ in range(28)]
    steps += [dict(dma=dma1, bload=bl(sB2), advA=advA1, advB=advB1, tr=tr1) for _ in range(14)]

    EX = 160

    def ext_loads_a():
        a("v_and_b32 v16, 31, v1")
        a(f"s_and_b32 s50, s{sW}, 1")
        a("s_lshl_b32 s50, s50, 4")
        a("v_xor_b32 v17, s50, v16")
        a("v_lshrrev_b32 v18, 5, v1")
        a("v_lshlrev_b32 v19, 9, v18")
        a("v_lshl_add_u32 v19, v17, 4, v19")
        a(f"s_lshr_b32 s72, s{sW}, 1")
        for tl in range(2):
            a(f"s_xor_b32 s50, s72, {tl}")
            a(f"s_lshl_b32 s51, s{st}, 1")
            a("s_add_u32 s51, s51, s50")
            a("s_mul_i32 s51, s51, 28")
            a(f"s_lshl_b32 s50, s{dt}, 2")
            a("s_add_u32 s51, s51, s50")
            a(f"s_add_u32 s51, s51, s{sW}")
            a("s_lshl_b32 s51, s51, 10")
            a(f"s_add_u32 s51, s51, {WS_XNA}")
            vm.issue("ext", f"buffer_load_dwordx4 v[{EX+4*tl}:{EX+4*tl+3}], v19, s[{rWS}:{rWS+3}], s51 offen {LSC}")

    def ext_loads_b():
        a("v_mul_u32_u24 v20, 896, v17")
        a("v_lshl_add_u32 v20, v18, 4, v20")
        for tl in range(2):
            a(f"s_xor_b32 s50, s72, {tl}")
            a(f"s_lshl_b32 s51, s{st}, 1")
            a("s_add_u32 s51, s51, s50")
            a(f"s_mul_i32 s51, s51, {32*896}")
            a(f"s_lshl_b32 s50, s{dt}, 7")
            a("s_add_u32 s51, s51, s50")
            a(f"s_lshl_b32 s50, s{sW}, 5")
            a("s_add_u32 s51, s51, s50")
            vm.issue("ext", f"buffer_load_dwordx4 v[{EX+8+4*tl}:{EX+8+4*tl+3}], v20, s[{rB}:{rB+3}], s51 offen")

    def ext_loads_c():
        a(f"s_lshl_b32 s50, s{st}, 6")
        a("v_add_u32 v21, s50, v17")
        a("v_lshlrev_b32 v21, 1, v21")
        for tl in range(2):
            a(f"s_xor_b32 s50, s72, {tl}")
            a("s_lshl_b32 s50, s50, 6")
            a("v_add_u32 v22, s50, v21")
            vm.issue("ext", f"global_load_ushort v{EX+16+tl}, v22, s[{pB2}:{pB2+1}]")
        a(f"s_lshl_b32 s50, s{dt}, 6")
        a("s_lshl_b32 s51, s72, 5")
        a("s_add_u32 s50, s50, s51")
        a("v_add_u32 v22, s50, v16")
        a("v_lshlrev_b32 v22, 1, v22")
        vm.issue("ext", f"global_load_ushort v{EX+18}, v22, s[{pDSK}:{pDSK+1}]")

    def red():
        a("v_lshlrev_b32 v23, 4, v1")
        red_addr(a, [24, 25, 26], [27, 28, 29], 23)

    def ext():
        vm.wait("ext")
        a(f"s_and_b32 s50, s{sW}, 1")
        a("s_lshl_b32 s50, s50, 4")
        a("v_lshlrev_b32 v20, 3, v18")
        a("v_add_u32 v20, s50, v20")
        a("v_sub_u32 v20, v16, v20")
        a("v_and_b32 v21, 1, v20")
        a("v_lshlrev_b32 v21, 4, v21")
        a(f"v_lshlrev_b32 v22, v21, v{EX+18}")
        a("v_mov_b32 v19, 0x3f80")
        a("v_lshlrev_b32 v19, v21, v19")
        a("v_lshrrev_b32 v20, 1, v20")
        for q in range(4):
            a(f"v_cmp_eq_u32 vcc, {q}, v20")
            a("s_nop 1")
            a(f"v_cndmask_b32 v{EX+20+q}, 0, v22, vcc")
            a(f"v_cndmask_b32 v{EX+24+q}, 0, v19, vcc")
        a("v_cmp_gt_u32 vcc, 32, v1")
        a(f"s_cmp_eq_u32 s{sW}, 0")
        a("s_cselect_b64 s[50:51], -1, 0")
        a("s_and_b64 vcc, vcc, s[50:51]")
        a("s_nop 1")
        a(f"v_cndmask_b32 v{EX+28}, 0, v{EX+16}, vcc")
        a(f"v_cndmask_b32 v{EX+32}, 0, v{EX+17}, vcc")
        for q in (1, 2, 3):
            a(f"v_mov_b32 v{EX+28+q}, 0")
            a(f"v_mov_b32 v{EX+32+q}, 0")
        a(f"v_mov_b32 v{EX+36}, 0x3f80")
        for q in (1, 2, 3):
            a(f"v_mov_b32 v{EX+36+q}, 0")
        a("s_nop 1")
        a(f"s_cmp_ge_u32 s{sW}, 2")
        a("s_cbranch_scc1 L_ext1")
        for part in range(2):
            dj = part
            if part == 1:
                a("s_branch L_ext2")
                a.label("L_ext1")
            for tl in range(2):
                c = ACC[tl][dj]
                a(f"v_mfma_f32_32x32x16_bf16 v[{c}:{c+15}], v[{EX+4*tl}:{EX+4*tl+3}], v[{EX+20}:{EX+23}], v[{c}:{c+15}]")
                a(f"v_mfma_f32_32x32x16_bf16 v[{c}:{c+15}], v[{EX+8+4*tl}:{EX+8+4*tl+3}], v[{EX+24}:{EX+27}], v[{c}:{c+15}]")
        a.label("L_ext2")
        for tl in range(2):
            for dj in range(2):
                c = ACC[tl][dj]
                a(f"v_mfma_f32_32x32x16_bf16 v[{c}:{c+15}], v[{EX+28+4*tl}:{EX+31+4*tl}], v[{EX+36}:{EX+39}], v[{c}:{c+15}]")

    def h_flags():
        a(f"s_lshr_b32 s74, s{st}, 2")
        a("s_lshl_b32 s74, s74, 4")
        poll_issue(a, vm, WS_F4, 7, 242, 249, base_sgpr=74)

    def h_ready():
        ts(a, 6, "g2")
        poll_check(a, vm, 7, 242, 249)
        ts(a, 9)
        ts(a, 7, "g2")
        if OPT["h_warm"]:
            a(f"s_lshl_b32 s50, s{sJ}, 7")
            a(f"s_lshl_b32 s51, s{sW}, 5")
            a("s_add_u32 s50, s50, s51")
            a("v_add_u32 v20, s50, v1")
            a(f"s_mov_b32 s51, {(2**32 + 55) // 56}")
            a("v_mul_hi_u32 v21, v20, s51")
            a("v_mul_u32_u24 v22, 56, v21")
            a("v_sub_u32 v22, v20, v22")
            a("v_lshrrev_b32 v19, 5, v21")
            a("v_and_b32 v21, 31, v21")
            a("v_lshl_add_u32 v21, v19, 8, v21")
            a(f"s_lshl_b32 s50, s{sX}, 5")
            a("v_add_u32 v21, s50, v21")
            a("v_mul_u32_u24 v21, 7168, v21")
            a("v_lshl_add_u32 v21, v22, 7, v21")
            a(f"v_add_u32 v21, {WS_HO}, v21")
            a("v_cmp_gt_u32 vcc, 32, v1")
            a(f"v_mov_b32 v22, {OOB}")
            a("s_nop 0")
            a("v_cndmask_b32 v21, v22, v21, vcc")
            vm.issue("pf", f"buffer_load_dword v255, v21, s[{rWS}:{rWS+3}], 0 offen sc1")

    npre = OPT["g2_npre"]
    for j in range(npre):
        dma2(j, j)
        advA2()
    if OPT["c_warm"]:
        a(f"s_mul_i32 s50, s{sJ}, 224")
        a(f"s_mul_i32 s51, s{sW}, 56")
        a("s_add_u32 s50, s50, s51")
        a("v_add_u32 v20, s50, v1")
        a(f"s_mov_b32 s51, {(2**32 + 447) // 448}")
        a("v_mul_hi_u32 v21, v20, s51")
        a("v_mul_u32_u24 v22, 448, v21")
        a("v_sub_u32 v22, v20, v22")
        a(f"v_mul_u32_u24 v21, {168*8}, v21")
        a("v_add_u32 v21, v21, v22")
        a(f"v_add_u32 v21, {112*8}, v21")
        a("v_lshlrev_b32 v21, 7, v21")
        a(f"v_add_u32 v21, {WS_WB}, v21")
        a("v_cmp_gt_u32 vcc, 56, v1")
        a(f"v_mov_b32 v22, {OOB}")
        a("s_nop 0")
        a("v_cndmask_b32 v21, v22, v21, vcc")
        vm.issue("pf", f"buffer_load_dword v255, v21, s[{rWS}:{rWS+3}], 0 offen")
    ext_loads_a()
    ext_loads_b()
    ext_loads_c()
    red()
    a(f"s_lshl_b32 s74, s{dt}, 5")
    if OPT["s3_wait"]:
        a(f"s_sleep {OPT['s3_wait']}")
    ts(a, 1, "g2")
    ts(a, 6, "g1e")
    poll_issue(a, vm, WS_F3, 28, 241, 248, base_sgpr=74)
    poll_check(a, vm, 28, 241, 248)
    ts(a, 7, "g1e")
    ts(a, 8)
    ts(a, 2, "g2")
    tc(a, 5, "clk")
    ts(a, 6, "clk")
    for j in range(4):
        if j >= npre:
            dma2(j, j)
            advA2()
        steps[j]["bload"](j, j)
        steps[j]["advB"]()
    hs = OPT["h_step"]
    hooks = {("after", 2): ext, ("after", hs - 10): h_flags, ("pre", hs): h_ready,
             "after_prologue": lambda: ts(a, 3, "g2"), ("after", 1): lambda: ts(a, 4, "g2"),
             ("after", 7): lambda: ts(a, 5, "g2"), ("after", 31): lambda: ts(a, 8, "g2"),
             ("after", 36): lambda: ts(a, 9, "g2")}
    stream_gemm(a, vm, steps, AS, BR, ACC, hooks, pre_all=True)
    ts(a, 10)
    ts(a, 10, "g2")
    tc(a, 7, "clk")
    ts(a, 8, "clk")
    a("s_nop 15")
    red_write(a, ACC, [24, 25, 26])
    a("v_lshrrev_b32 v2, 5, v1")
    a("v_mul_u32_u24 v2, 7168, v2")
    a("v_and_b32 v3, 31, v1")
    a("v_lshl_add_u32 v2, v3, 2, v2")
    a(f"s_lshl_b32 s72, s{st}, 6")
    a(f"s_lshl_b32 s50, s{sW}, 4")
    a("s_add_u32 s72, s72, s50")
    a("s_mul_i32 s72, s72, 1792")
    a(f"s_lshl_b32 s50, s{dt}, 8")
    a("s_add_u32 s72, s72, s50")
    a("s_waitcnt lgkmcnt(0)")
    a("s_barrier")
    red_read_add(a, ACC, [27, 28, 29], 192)
    for r in range(8):
        tok = 8 * (r >> 2) + (r & 3)
        a(f"s_add_u32 s50, s72, {tok*1792}")
        for dj in range(2):
            a(f"buffer_store_dword v{ACC[0][dj]+r}, v2, s[{rC}:{rC+3}], s50 offen offset:{128*dj} {OPT['nt_out']}")


def kernel(a):
    a.raw(".text")
    a.raw(f".globl {NAME}")
    a.raw(".p2align 8")
    a.raw(f".type {NAME},@function")
    a.label(NAME)
    a("s_cmp_ge_u32 s2, 256")
    a("s_cbranch_scc1 L_end")
    ts_begin(a)
    a(f"s_load_dwordx16 s[16:31], s[0:1], 0")
    a(f"s_load_dwordx2 s[32:33], s[0:1], {KA['dskip']}")
    a(f"s_load_dwordx8 s[36:43], s[0:1], {KA['w1']}")
    a(f"s_load_dwordx4 s[44:47], s[0:1], {KA['out']}")
    a(f"s_load_dwordx2 s[48:49], s[0:1], {KA['ws']}")
    a("v_lshrrev_b32 v2, 6, v0")
    a("v_and_b32 v1, 63, v0")
    a(f"v_readfirstlane_b32 s{sW}, v2")
    a(f"s_and_b32 s{sX}, s2, 7")
    a(f"s_lshr_b32 s{sJ}, s2, 3")
    vm = VM(a)
    ln_phase(a, vm)
    ops0 = list(vm.ops)
    a(f"s_cmp_ge_u32 s{sJ}, 25")
    a("s_cbranch_scc1 L_bu")
    a(f"s_cmp_ge_u32 s{sW}, 4")
    a("s_cbranch_scc1 L_helper")
    a(f"s_mul_i32 s50, s{sX}, 49")
    a("s_add_u32 s51, s50, 50")
    a("s_add_u32 s50, s50, 1")
    a("s_lshr_b32 s50, s50, 1")
    a("s_lshr_b32 s51, s51, 1")
    a(f"s_add_u32 s50, s50, s{sJ}")
    a("s_cmp_ge_u32 s50, s51")
    a("s_cbranch_scc1 L_idle")
    a(f"s_mul_hi_u32 s{sT0}, s50, {(2**32 + 6) // 7}")
    a(f"s_mul_i32 s51, s{sT0}, 7")
    a(f"s_sub_u32 s{sT1}, s50, s51")
    role_G1(a, vm)
    a("s_branch L_g2")
    a.label("L_idle")
    iv = VM(a)
    iv.ops = list(ops0)
    s1_signal(a, iv)
    poll_issue(a, iv, WS_F1, 256, 240, 244)
    poll_check(a, iv, 256, 240, 244)
    w2_warm(a, iv)
    a("s_branch L_g2")
    a.label("L_bu")
    bv = VM(a)
    bv.ops = list(ops0)
    role_Bu(a, bv)
    a(f"s_cmp_ge_u32 s{sW}, 4")
    a("s_cbranch_scc1 L_fin")
    a(f"s_cmp_ge_u32 s{sJ}, 28")
    a("s_cbranch_scc1 L_fin")
    w2_warm(a, bv)
    a.label("L_g2")
    a(f"s_mul_hi_u32 s50, s{sJ}, {(2**32 + 6) // 7}")
    a("s_mul_i32 s51, s50, 7")
    a(f"s_sub_u32 s{sT1}, s{sJ}, s51")
    a(f"s_lshl_b32 s{sT0}, s{sX}, 2")
    a(f"s_add_u32 s{sT0}, s{sT0}, s50")
    phase_G2(a)
    a.label("L_fin")
    ts_end(a)
    a.label("L_end")
    a("s_endpgm")
    helper_path(a, ops0)
    a.raw('.section .rodata,"a"')
    a.raw(".p2align 6")
    a.raw(f".amdhsa_kernel {NAME}")
    a.raw("  .amdhsa_next_free_vgpr 256")
    a.raw("  .amdhsa_next_free_sgpr 102")
    a.raw("  .amdhsa_accum_offset 256")
    a.raw("  .amdhsa_group_segment_fixed_size 0")
    a.raw("  .amdhsa_kernarg_size 136")
    a.raw("  .amdhsa_user_sgpr_count 2")
    a.raw("  .amdhsa_user_sgpr_kernarg_segment_ptr 1")
    a.raw("  .amdhsa_system_sgpr_workgroup_id_x 1")
    a.raw("  .amdhsa_float_denorm_mode_32 3")
    a.raw(".end_amdhsa_kernel")


def build(diag=False):
    global DIAG
    DIAG = diag
    _uid[0] = 0
    a = Asm()
    lines = []
    ref = "parallel_sum__ssm_conv_s5__mixer_token_mlp__prompt.s.ref"
    for ln in open(ref).read().split("\n"):
        if ln.startswith("; Override launch"):
            break
        lines.append(ln)
    lines.append(f"; @launch grid=(256,1,1) block=(512,1,1) lds={LDS_BYTES}")
    lines.append('.amdgcn_target "amdgcn-amd-amdhsa--gfx950"')
    kernel(a)
    return "\n".join(lines) + "\n" + a.text()


if __name__ == "__main__":
    import argparse
    ap = argparse.ArgumentParser()
    ap.add_argument("-o", default="fused.s")
    ap.add_argument("--diag", action="store_true")
    args = ap.parse_args()
    open(args.o, "w").write(build(args.diag))
```
